```python
import torch

def _softmax(x, axis=-1):
    return torch.softmax(x, dim=axis)
def _gelu(x):
    return torch.nn.functional.gelu(x, approximate="tanh")
def _silu(x):
    return torch.nn.functional.silu(x)
def _sigmoid(x):
    return torch.sigmoid(x)
def _layernorm(x, axis=-1, eps=1e-5):
    m = x.mean(dim=axis, keepdim=True)
    v = x.var(dim=axis, keepdim=True, unbiased=False)
    return (x - m) / torch.sqrt(v + eps)
def _scatter_add(tgt, idx, src, axis=0):
    return tgt.clone().index_add_(axis, idx, src)
def _segment_sum(src, seg, n):
    out = torch.zeros((n,) + src.shape[1:], dtype=src.dtype)
    return out.index_add_(0, seg, src)
def _pad(x, pw):
    flat = tuple(v for pair in reversed(pw) for v in pair)
    return torch.nn.functional.pad(x, flat)

kernel_name = 'interleave_layers__sliding_local_dilated__glu_gated_glu__prompt'

def setup_inputs():

    _w = (lambda a: (lambda t: t.to(torch.bfloat16) if t.is_floating_point() else t)(torch.as_tensor(a)))
    def _A_setup():
        B, S, D = 1, 2048, 512
        return {
            "x": _w((lambda *s: torch.randn(*s, dtype=torch.bfloat16) * 0.05)(B, S, D)),
            "wqkv": _w((lambda *s: torch.randn(*s, dtype=torch.bfloat16) * 0.05)(D, 3 * D)),
            "wo": _w((lambda *s: torch.randn(*s, dtype=torch.bfloat16) * 0.05)(D, D)),
        }
    _A_in = _A_setup()

    def _B_setup():
        B, S, D, F = 1, 2048, 512, 1792
        return {
            "x": _w((lambda *s: torch.randn(*s, dtype=torch.bfloat16) * 0.05)(B, S, D)),
            "w_gate": _w((lambda *s: torch.randn(*s, dtype=torch.bfloat16) * 0.05)(D, F)),
            "w_up": _w((lambda *s: torch.randn(*s, dtype=torch.bfloat16) * 0.05)(D, F)),
            "w_down": _w((lambda *s: torch.randn(*s, dtype=torch.bfloat16) * 0.05)(F, D)),
        }
    _B_in = _B_setup()

    return {
        "A_x": _A_in["x"],
        "A_wqkv": _A_in["wqkv"],
        "A_wo": _A_in["wo"],
        "B_x": _B_in["x"],
        "B_w_gate": _B_in["w_gate"],
        "B_w_up": _B_in["w_up"],
        "B_w_down": _B_in["w_down"],
    }

def reference(A_x, A_wqkv, A_wo, B_x, B_w_gate, B_w_up, B_w_down):
    def _A_ref(x, wqkv, wo):
        B, S, D = x.shape
        H = 32; Dh = D // H
        W, dil = 8, 2
        qkv = (lambda x, *d: x.permute(*d))((x @ wqkv).reshape(B, S, 3, H, Dh), 2, 0, 3, 1, 4)
        q, k, v = qkv[0], qkv[1], qkv[2]
        scale = Dh ** -0.5
        pos = torch.arange(S)
        off = torch.arange(W) * dil
        idx = pos[:, None] - off[None, :]
        mask = idx >= 0
        idx_c = torch.where(mask, idx, 0).reshape(-1)
        kg = k[:, :, idx_c, :].reshape(B, H, S, W, Dh)
        vg = v[:, :, idx_c, :].reshape(B, H, S, W, Dh)
        logits = torch.einsum("bhsd,bhswd->bhsw", q, kg) * scale
        logits = torch.where(mask[None, None, :, :], logits, -1e9)
        attn = _softmax(logits, axis=-1)
        o = torch.einsum("bhsw,bhswd->bhsd", attn, vg)
        return (lambda x, *d: x.permute(*d))(o, 0, 2, 1, 3).reshape(B, S, D) @ wo

    def _B_ref(x, w_gate, w_up, w_down):
        g = torch.einsum("bsd,df->bsf", x, w_gate)
        u = torch.einsum("bsd,df->bsf", x, w_up)
        h = _sigmoid(g) * u
        return torch.einsum("bsf,fd->bsd", h, w_down)

    x = A_x
    x = x + _A_ref(_layernorm(x, axis=-1), A_wqkv, A_wo)
    x = x + _B_ref(_layernorm(x, axis=-1), B_w_gate, B_w_up, B_w_down)
    x = x + _A_ref(_layernorm(x, axis=-1), A_wqkv, A_wo)
    x = x + _B_ref(_layernorm(x, axis=-1), B_w_gate, B_w_up, B_w_down)
    return x
```

```python
import re

_REG = re.compile(r'^(-|abs\()?([vas])(\d+)\)?$')
_RNG = re.compile(r'^(-)?([vas])\[(\d+):(\d+)\]$')


def regs_of(tok):
    tok = tok.strip()
    m = _REG.match(tok)
    if m:
        return [(m.group(2), int(m.group(3)))]
    m = _RNG.match(tok)
    if m:
        return [(m.group(2), i) for i in range(int(m.group(3)), int(m.group(4)) + 1)]
    if tok == 'vcc':
        return [('s', 'vcc')]
    if tok == 'exec':
        return [('s', 'exec')]
    if tok == 'm0':
        return [('s', 'm0')]
    return []


def V(i, n=1):
    return f'v{i}' if n == 1 else f'v[{i}:{i + n - 1}]'


def A(i, n=1):
    return f'a{i}' if n == 1 else f'a[{i}:{i + n - 1}]'


def S(i, n=1):
    return f's{i}' if n == 1 else f's[{i}:{i + n - 1}]'


TRANS = ('v_exp_f32', 'v_log_f32', 'v_rcp_f32', 'v_rsq_f32', 'v_sqrt_f32', 'v_sin_f32', 'v_cos_f32')
RMW = ('v_fmac_f32', 'v_dot2c_f32_bf16')


class Ins:
    __slots__ = ('op', 'text', 'kind', 'rd', 'wr', 'srcc', 'ab', 'passes', 'states', 'tag')

    def __init__(self, op, args, mods='', tag=None):
        self.op = op
        self.tag = tag
        self.text = op + (' ' + ', '.join(args) if args else '') + (' ' + mods if mods else '')
        self.srcc = set()
        self.ab = set()
        self.passes = 0
        self.states = 1
        R = [regs_of(a) for a in args]
        flat = lambda L: set(x for l in L for x in l)
        if op.startswith('v_mfma'):
            self.kind = 'mfma'
            self.wr = set(R[0])
            self.ab = set(R[1]) | set(R[2])
            self.srcc = set(R[3])
            self.rd = self.ab | self.srcc
            self.passes = 8 if '32x32' in op else 4
        elif op.startswith('v_permlane'):
            self.kind = 'valu'
            self.wr = flat(R)
            self.rd = flat(R)
        elif op.startswith('v_'):
            self.kind = 'valu'
            self.wr = set(R[0])
            self.rd = flat(R[1:])
            if op in RMW:
                self.rd |= self.wr
        elif op.startswith('ds_read'):
            self.kind = 'ds'
            self.wr = set(R[0])
            self.rd = flat(R[1:])
        elif op.startswith('ds_write'):
            self.kind = 'ds'
            self.wr = set()
            self.rd = flat(R)
        elif op.startswith('buffer_load'):
            self.kind = 'vm'
            if 'lds' in mods.split():
                self.wr = set()
                self.rd = flat(R) | {('s', 'm0')}
            else:
                self.wr = set(R[0])
                self.rd = flat(R[1:])
        elif op.startswith('buffer_store'):
            self.kind = 'vm'
            self.wr = set()
            self.rd = flat(R)
        elif op.startswith('buffer_'):
            self.kind = 'vm'
            self.wr = set()
            self.rd = set()
        elif op.startswith('s_load') or op.startswith('s_memtime') or op.startswith('s_memrealtime'):
            self.kind = 'smem'
            self.wr = set(R[0])
            self.rd = flat(R[1:])
        elif op == 's_nop':
            self.kind = 'nop'
            self.wr = set()
            self.rd = set()
            self.states = int(args[0]) + 1
        elif op.startswith('s_cmp') or op.startswith('s_cbranch') or op in (
                's_branch', 's_barrier', 's_waitcnt', 's_sleep', 's_endpgm', 's_setprio'):
            self.kind = 'salu'
            self.wr = set()
            self.rd = flat(R)
        elif op.startswith('s_'):
            self.kind = 'salu'
            self.wr = set(R[0])
            self.rd = flat(R[1:])
        else:
            raise ValueError('unknown op ' + op)


def is_vec(r):
    return r[0] in 'va'


class Prog:
    def __init__(self):
        self.out = []
        self.hist = []
        self.vm = []
        self.ds = []
        self.smem = []
        self.nins = 0
        self.nwait = 0
        self.nnop = 0
        self.uid = 0

    def raw(self, text):
        self.out.append(text)

    def comment(self, text):
        self.out.append('; ' + text)

    def label(self, name):
        self.out.append(name + ':')

    def newlabel(self, base):
        self.uid += 1
        return f'L_{base}_{self.uid}'

    def _put(self, ins):
        self.out.append('  ' + ins.text)
        self.hist.append(ins)
        if len(self.hist) > 40:
            self.hist.pop(0)
        self.nins += 1

    def _waitcnt(self, vm=None, lgkm=None):
        parts = []
        if vm is not None:
            parts.append(f'vmcnt({vm})')
            del self.vm[:max(0, len(self.vm) - vm)]
        if lgkm is not None:
            parts.append(f'lgkmcnt({lgkm})')
            del self.ds[:max(0, len(self.ds) - lgkm)]
            if lgkm == 0:
                self.smem = []
        if parts:
            self._put(Ins('s_waitcnt', [' '.join(parts)]))
            self.nwait += 1

    def _need(self, q, pred):
        for i in range(len(q) - 1, -1, -1):
            if pred(q[i]):
                return len(q) - 1 - i
        return None

    def wait(self, vmtag=None, dstag=None, vm0=False, ds0=False):
        vm = lg = None
        if vm0:
            vm = 0 if self.vm else None
        elif vmtag is not None:
            tags = vmtag if isinstance(vmtag, (list, tuple, set)) else [vmtag]
            vm = self._need(self.vm, lambda o: o.tag in tags)
        if ds0:
            lg = 0 if (self.ds or self.smem) else None
        elif dstag is not None:
            tags = dstag if isinstance(dstag, (list, tuple, set)) else [dstag]
            lg = self._need(self.ds, lambda o: o.tag in tags)
            if lg is not None and self.smem:
                lg = 0
        self._waitcnt(vm, lg)

    def force_wait(self, vm=None, lgkm=None):
        self._waitcnt(vm, lgkm)

    def _states_since(self, pred):
        n = 0
        for o in reversed(self.hist):
            if pred(o):
                return n, o
            n += o.states
        return None, None

    def _hazard(self, ins):
        need = 0
        touched = ins.rd | ins.wr
        n = 0
        for o in reversed(self.hist):
            req = 0
            if o.kind == 'valu':
                ov = set(r for r in o.wr if is_vec(r))
                osg = set(r for r in o.wr if not is_vec(r))
                if ins.kind == 'mfma' and ov & ins.rd:
                    req = max(req, 2)
                if ins.op.startswith('v_permlane') and ov & ins.rd:
                    req = max(req, 2)
                if ins.op in ('v_readfirstlane_b32', 'v_readlane_b32') and ov & ins.rd:
                    req = max(req, 1)
                if o.op in TRANS and ins.kind == 'valu' and ins.op not in TRANS and ov & ins.rd:
                    req = max(req, 1)
                if o.op in TRANS and ins.kind == 'valu' and ins.op in TRANS and ov & ins.rd:
                    req = max(req, 1)
                if o.op.startswith('v_dot2') and ov & touched:
                    if not (ins.op == o.op and not (ov & (ins.rd - ins.wr))):
                        req = max(req, 3)
                if osg & ins.rd:
                    if ins.kind == 'vm':
                        req = max(req, 5)
                    elif ins.kind == 'valu':
                        req = max(req, 2)
                    elif ins.kind in ('salu', 'smem'):
                        req = max(req, 1)
                if 'dpp' in ins.text and ov & ins.rd:
                    req = max(req, 2)
            elif o.kind == 'mfma':
                p8 = o.passes == 8
                if ins.kind == 'mfma':
                    if o.wr & ins.ab:
                        req = max(req, 12 if p8 else 8)
                    if o.wr & ins.srcc:
                        if not (o.wr == ins.srcc and o.op == ins.op):
                            req = max(req, 10 if p8 else 6)
                    elif o.wr & ins.wr:
                        req = max(req, 10 if p8 else 6)
                elif ins.kind in ('valu', 'ds', 'vm'):
                    if o.wr & touched:
                        req = max(req, 12 if p8 else 8)
                    if o.srcc & ins.wr:
                        req = max(req, 7 if p8 else 3)
            elif o.kind == 'vm':
                if o.op in ('buffer_store_dwordx4', 'buffer_store_dwordx3') and ins.kind in ('valu', 'mfma', 'ds', 'vm'):
                    if set(r for r in o.rd if is_vec(r)) & ins.wr:
                        req = max(req, 2)
            elif o.kind == 'salu':
                if ('s', 'm0') in o.wr and ('s', 'm0') in ins.rd:
                    req = max(req, 1)
            if req > n:
                need = max(need, req - n)
            n += o.states
            if n >= 20:
                break
        while need > 0:
            k = min(need, 16)
            self._put(Ins('s_nop', [str(k - 1)]))
            self.nnop += 1
            need -= k

    def I(self, op, *args, mods='', tag=None):
        ins = Ins(op, [str(a) for a in args], mods, tag)
        touched = ins.rd | ins.wr
        vm = self._need(self.vm, lambda o: o.wr & touched)
        lg = self._need(self.ds, lambda o: o.wr & touched)
        if any(o.wr & touched for o in self.smem):
            lg = 0
        if lg is not None and self.smem:
            lg = 0
        if ins.kind == 'vm' and len(self.vm) >= 63:
            vm = 62 if vm is None else min(vm, 62)
        if ins.kind == 'ds' and len(self.ds) >= 15:
            lg = 14 if lg is None else min(lg, 14)
            if self.smem:
                lg = 0
        if vm is not None or lg is not None:
            self._waitcnt(vm, lg)
        self._hazard(ins)
        self._put(ins)
        if ins.kind == 'vm':
            self.vm.append(ins)
        elif ins.kind == 'ds':
            self.ds.append(ins)
        elif ins.kind == 'smem':
            self.smem.append(ins)
        return ins

    def run(self, items):
        for it in items:
            if callable(it):
                it()
            else:
                kw = {}
                if isinstance(it[-1], dict):
                    kw = it[-1]
                    it = it[:-1]
                self.I(*it, **kw)

    def settle(self, n=20):
        self._put(Ins('s_nop', [str(min(n, 16) - 1)]))

    def text(self):
        return '\n'.join(self.out) + '\n'
```

```python
import sys
sys.path.insert(0, 'dev')
from asmlib import *

NAME = 'interleave_layers__sliding_local_dilated__glu_gated_glu__prompt_kernel'

FLAGS = 0x000000
COLF = 0x020000
EPOCH = 0x030000
HALO = 0x040000
ST = [0x100000, 0x180000, 0x200000]
CSP = 0x280000
XF = [0x400000, 0x600000, 0x800000]
OF = [0xA00000, 0xC00000]
WGU = 0x1000000
HF = [0x1400000, 0x1C00000]
TDUMP = 0x2800000
F_HELLO = 4096
F_HALO = 4608
OOB = 0x80000000

WK, WV, WQ = 0, 32768, 65536
XB = 98304
KVB = XB + 10 * 4096
RB = XB + 9 * 4096
PS = 161792
PS_CSGU = PS
PS_CS = PS + 1024

SX, SWQ, SWO, SWG, SWU, SWD, SOUT, SWS = 4, 8, 12, 16, 20, 24, 28, 32
TAG, MODE, sW, sG, sM, sTH, sCT, sBJ, sPAR = 36, 38, 39, 40, 41, 42, 43, 44, 45
MASK13, MASK24, sFB, sOWN, HIM = 46, 48, 50, 51, 52
sT = 54
sXCC = 68
sCNT = 69
STAMP0 = 70

LOG2E = 1.4426950408889634


def f2h(x):
    import struct
    return hex(struct.unpack('<I', struct.pack('<f', x))[0])


def srd(i):
    return S(i, 4)


def wo_reg(ksl, ct):
    n = ksl * 2 + ct
    return A(224 + 4 * n, 4) if n < 8 else V(224 + 4 * (n - 8), 4)


def wo_half(ksl, ct, e):
    n = ksl * 2 + ct
    return A(224 + 4 * n + 2 * e, 2) if n < 8 else V(224 + 4 * (n - 8) + 2 * e, 2)


def wd_reg(ksl, ct):
    return A(4 * (ksl * 2 + ct), 4)


def wd_half(ksl, ct, e):
    return A(4 * (ksl * 2 + ct) + 2 * e, 2)


class Gen:
    def __init__(self, opt):
        self.o = opt
        self.P = Prog()
        self.nstamp = 0
        self.stamp_names = []

    def I(self, *a, **k):
        return self.P.I(*a, **k)

    def stamp(self, name):
        if not self.o.get('stamps'):
            return
        i = self.nstamp
        assert i < 16
        self.nstamp += 1
        self.stamp_names.append(name)
        self.I('s_memtime', S(STAMP0 + 2 * i, 2))
        self.P.wait(ds0=True)

    def smul_add(self, dst, terms, const=0):
        I = self.I
        first = True
        for (r, mul) in terms:
            if first:
                I('s_mul_i32', S(dst), S(r), mul)
                first = False
            else:
                I('s_mul_i32', S(sT + 13), S(r), mul)
                I('s_add_u32', S(dst), S(dst), S(sT + 13))
        if first:
            I('s_mov_b32', S(dst), const)
        elif const:
            I('s_add_u32', S(dst), S(dst), const)

    def vfield(self, dst, terms, sadd=None, const=0, tmp=15):
        I = self.I
        first = True
        for (lo, n, mul) in terms:
            t = dst if first else tmp
            if lo + n >= 6:
                if lo == 0:
                    src = V(0)
                else:
                    I('v_lshrrev_b32', V(t), lo, V(0))
                    src = V(t)
            else:
                I('v_bfe_u32', V(t), V(0), lo, n)
                src = V(t)
            if mul & (mul - 1) == 0:
                sh = mul.bit_length() - 1
                if first:
                    I('v_lshlrev_b32', V(dst), sh, src)
                else:
                    I('v_lshl_add_u32', V(dst), src, sh, V(dst))
            else:
                I('v_mul_u32_u24', V(t), mul, src)
                if not first:
                    I('v_add_u32', V(dst), V(dst), V(t))
            first = False
        if const:
            I('v_add_u32', V(dst), const, V(dst))
        if sadd is not None:
            I('v_add_u32', V(dst), S(sadd), V(dst))

    def barrier(self):
        self.I('s_barrier')

    def dma(self, vaddr, srdn, soff, ldsbase_s, ldsconst, tag, imm=0, mods=''):
        ops = []
        if ldsbase_s is None:
            ops.append(('s_mov_b32', 'm0', ldsconst - imm))
        else:
            ops.append(('s_add_u32', 'm0', S(ldsbase_s), ldsconst - imm))
        m = 'offen' + (f' offset:{imm}' if imm else '') + (' ' + mods if mods else '') + ' lds'
        ops.append(('buffer_load_dwordx4', V(vaddr), srd(srdn), S(soff), dict(mods=m, tag=tag)))
        return ops

    def signal(self, soff_reg, const, force_slow=False, vt=220):
        P, I = self.P, self.I
        I('v_mov_b32', V(vt), S(TAG))
        I('v_mov_b32', V(vt + 1), S(TAG + 1))
        I('s_add_u32', S(sT + 12), S(soff_reg), const)
        P.wait(vmtag='st')
        I('s_mov_b64', 'exec', 1)
        if force_slow:
            I('buffer_store_dwordx2', V(vt, 2), 'off', srd(SWS), S(sT + 12), mods='sc1', tag='fl')
        else:
            lslow = P.newlabel('slow')
            ldone = P.newlabel('sigd')
            I('s_cmp_lg_u32', S(MODE), 0)
            I('s_cbranch_scc1', lslow)
            I('buffer_store_dwordx2', V(vt, 2), 'off', srd(SWS), S(sT + 12), tag='fl')
            I('s_branch', ldone)
            P.label(lslow)
            P.raw('  buffer_wbl2 sc1')
            P.raw('  s_waitcnt vmcnt(0)')
            P.raw(f'  buffer_store_dwordx2 {V(vt, 2)}, off, {srd(SWS)}, {S(sT + 12)} sc1')
            P.label(ldone)
        I('s_mov_b64', 'exec', -1)

    def poll(self, soff_reg, const, mask, vt=220, hello=False, inv=True):
        P, I = self.P, self.I
        I('v_lshlrev_b32', V(vt + 2), 3, V(0))
        I('s_add_u32', S(sT + 12), S(soff_reg), const)
        I('s_mov_b32', S(sCNT), 0)
        loop = P.newlabel('poll')
        done = P.newlabel('polld')
        P.label(loop)
        I('buffer_load_dwordx2', V(vt, 2), V(vt + 2), srd(SWS), S(sT + 12), mods='offen sc1')
        I('s_add_u32', S(sCNT), S(sCNT), 1)
        I('s_cmp_gt_u32', S(sCNT), 0x40000)
        I('s_cbranch_scc1', 'L_end')
        P.force_wait(vm=0)
        if hello:
            I('v_mov_b32', V(vt + 3), V(vt + 1))
            I('v_and_b32', V(vt + 1), -16, V(vt + 1))
            I('s_and_b32', S(sT + 11), S(TAG + 1), -16)
            I('s_mov_b32', S(sT + 10), S(TAG))
            I('v_cmp_ne_u64', 'vcc', S(sT + 10, 2), V(vt, 2))
        else:
            I('v_cmp_ne_u64', 'vcc', S(TAG, 2), V(vt, 2))
        I('s_and_b64', 'vcc', 'vcc', mask)
        I('s_cbranch_scc1', loop)
        if hello:
            I('v_and_b32', V(vt + 3), 15, V(vt + 3))
            I('v_cmp_ne_u32', 'vcc', S(sXCC), V(vt + 3))
            I('s_and_b64', 'vcc', 'vcc', mask)
            I('s_cselect_b32', S(MODE), 1, 0)
            if self.o.get('force_slow'):
                I('s_mov_b32', S(MODE), 1)
        elif inv:
            I('s_cmp_eq_u32', S(MODE), 0)
            I('s_cbranch_scc1', done)
            P.raw('  buffer_inv sc1')
            P.raw('  s_waitcnt vmcnt(0)')
            P.label(done)

    def prologue(self):
        P, I = self.P, self.I
        I('s_cmp_ge_u32', S(2), 256)
        I('s_cbranch_scc1', 'L_end')
        I('s_load_dwordx16', S(72, 16), S(0, 2), 0)
        I('s_load_dwordx4', S(88, 4), S(0, 2), 64)
        P.raw(f'  s_getreg_b32 {S(sXCC)}, hwreg(HW_REG_XCC_ID, 0, 4)')
        I('v_lshrrev_b32', V(1), 6, V(0))
        I('v_and_b32', V(0), 63, V(0))
        I('v_readfirstlane_b32', S(sW), V(1))
        I('s_and_b32', S(sT), S(2), 7)
        I('s_lshr_b32', S(sT + 1), S(2), 3)
        I('s_and_b32', S(sM), S(sT + 1), 15)
        I('s_lshr_b32', S(sT + 1), S(sT + 1), 4)
        I('s_lshl_b32', S(sT), S(sT), 1)
        I('s_add_u32', S(sG), S(sT), S(sT + 1))
        I('s_lshr_b32', S(sPAR), S(sG), 3)
        I('s_and_b32', S(sBJ), S(sG), 7)
        I('s_lshr_b32', S(sTH), S(sM), 3)
        I('s_and_b32', S(sCT), S(sM), 7)
        I('s_mov_b32', S(MODE), 1)
        I('s_lshr_b32', S(sT), S(sW), 1)
        I('s_cmp_eq_u32', S(sT), 0)
        I('s_cselect_b32', S(MASK13), -1, 0)
        I('s_cselect_b32', S(MASK13 + 1), 0, -1)
        I('s_lshl_b32', S(sT), S(sTH), 1)
        I('s_lshl_b32', S(sT + 1), S(sW), 4)
        I('s_add_u32', S(sT), S(sT), S(sT + 1))
        I('s_mov_b32', S(MASK24), 0x3333)
        I('s_mov_b32', S(MASK24 + 1), 0)
        I('s_lshl_b64', S(MASK24, 2), S(MASK24, 2), S(sT))
        I('s_mov_b32', S(HIM), 0)
        I('s_mov_b32', S(HIM + 1), -1)
        self.smul_add(sFB, [(sG, 8192)], FLAGS)
        self.smul_add(sOWN, [(sG, 8192), (sM, 32), (sW, 8)], FLAGS)
        for (d, src, n) in ((SX, 72, 2097152), (SWQ, 74, 1572864), (SWO, 76, 524288), (SWG, 80, 1835008),
                            (SWU, 82, 1835008), (SWD, 84, 1835008), (SOUT, 86, 2097152), (SWS, 90, 0x10000000)):
            I('s_mov_b32', S(d), S(src))
            I('s_mov_b32', S(d + 1), S(src + 1))
            I('s_mov_b32', S(d + 2), n)
            I('s_mov_b32', S(d + 3), 0x20000)
        I('s_load_dwordx2', S(TAG, 2), S(90, 2), EPOCH)

    def finish_tag_and_hello(self):
        P, I = self.P, self.I
        I('s_add_u32', S(TAG), S(TAG), 0x7F4A7C15)
        I('s_addc_u32', S(TAG + 1), S(TAG + 1), 0x9E3779B9)
        skip = P.newlabel('nohello')
        I('s_and_b32', S(sT), S(TAG + 1), -16)
        I('s_or_b32', S(sT), S(sT), S(sXCC))
        I('v_mov_b32', V(220), S(TAG))
        I('v_mov_b32', V(221), S(sT))
        self.smul_add(sT + 1, [(sG, 8192), (sM, 8)], FLAGS + F_HELLO)
        I('s_mov_b64', 'exec', 1)
        I('buffer_store_dwordx2', V(220, 2), 'off', srd(SWS), S(sT + 1), mods='sc1', tag='fl')
        I('s_mov_b64', 'exec', -1)

    def prepass_issue(self):
        I = self.I
        self.vfield(9, [(3, 3, 3584), (0, 3, 16)])
        I('s_lshr_b32', S(sT), S(sW), 1)
        I('s_and_b32', S(sT + 1), S(sW), 1)
        self.smul_add(sT + 2, [(sG, 32 * 3584), (sT, 16 * 3584), (sM, 224), (sT + 1, 128)])
        I('s_add_u32', S(sT + 3), S(sT + 2), 8 * 3584)
        self.smul_add(sT + 4, [(sW, 10240)], XB)
        for mt in range(2):
            for rh in range(2):
                self.P.run(self.dma(9, SWG if mt == 0 else SWU, sT + 2 + rh, sT + 4, mt * 2048 + rh * 1024, 'pre'))

    def prepass_finish(self):
        P, I = self.P, self.I
        F = 16
        AC = 32
        self.smul_add(sT + 4, [(sW, 10240)], XB)
        self.vfield(9, [(4, 1, 2048), (5, 1, 1024), (2, 2, 128), (0, 1, 16), (1, 1, 8)], sadd=sT + 4)
        I('v_mov_b32', V(10), 0x3f803f80)
        I('v_lshlrev_b32', V(11), 2, V(0))
        I('s_lshr_b32', S(sT), S(sW), 1)
        I('s_and_b32', S(sT + 1), S(sW), 1)
        self.smul_add(sT + 2, [(sM, 8 * 32768), (sT + 1, 4 * 32768), (sG, 2048), (sT, 1024)], WGU)
        self.smul_add(sT + 3, [(sM, 32768), (sG, 2048), (sT, 1024), (sT + 1, 512)], CSP)
        for j in range(4):
            I('v_mov_b32', V(AC + j), 0)
        P.wait(vmtag='pre')
        for j in range(4):
            for e in range(2):
                I('ds_read_b64_tr_b16', V(F + 4 * j + 2 * e, 2), V(9), mods=f'offset:{j * 32 + e * 512}')
        for j in range(4):
            I('buffer_store_dwordx4', V(F + 4 * j, 4), V(8), srd(SWS), S(sT + 2), mods='offen sc1', tag='st')
            if j < 3:
                I('s_add_u32', S(sT + 2), S(sT + 2), 32768)
        for i in range(4):
            for j in range(4):
                I('v_dot2c_f32_bf16', V(AC + j), V(F + 4 * j + i), V(10))
        for jp in range(2):
            I('v_permlane32_swap_b32', V(AC + 2 * jp), V(AC + 2 * jp + 1))
        for jp in range(2):
            I('v_add_f32', V(AC + 2 * jp), V(AC + 2 * jp), V(AC + 2 * jp + 1))
            I('buffer_store_dword', V(AC + 2 * jp), V(11), srd(SWS), S(sT + 3), mods=f'offen offset:{jp * 256} sc1', tag='st')

    def col_signal(self):
        self.smul_add(sT + 5, [(sM, 4096), (sG, 32), (sW, 8)], COLF)
        self.signal(sT + 5, 0, force_slow=True)

    def col_wait_and_cs(self):
        P, I = self.P, self.I
        self.smul_add(sT + 5, [(sM, 4096)], COLF)
        self.poll(sT + 5, 0, -1, inv=False)
        B = 116
        self.vfield(9, [(4, 2, 8192), (0, 4, 16)])
        self.smul_add(sT + 5, [(sM, 32768), (sW, 256)], CSP)
        I('s_add_u32', S(sT + 6), S(sT + 5), 4096)
        for i in range(8):
            I('buffer_load_dwordx4', V(B + 4 * i, 4), V(9), srd(SWS), S(sT + 5 + (i >> 2)),
              mods=f'offen offset:{(i & 3) * 1024} sc1')

    def cs_finish(self):
        P, I = self.P, self.I
        B = 116
        for i in range(1, 8):
            for c in range(0, 4, 2):
                I('v_pk_add_f32', V(B + c, 2), V(B + c, 2), V(B + 4 * i + c, 2))
        for op in ('v_permlane32_swap_b32', 'v_permlane16_swap_b32'):
            for c in range(4):
                I('v_mov_b32', V(B + 4 + c), V(B + c))
            for c in range(4):
                I(op, V(B + c), V(B + 4 + c))
            for c in range(4):
                I('v_add_f32', V(B + c), V(B + c), V(B + 4 + c))
        self.smul_add(sT + 5, [(sW, 256)], PS_CSGU)
        self.vfield(9, [(0, 4, 16)], sadd=sT + 5)
        I('ds_write_b128', V(9), V(B, 4), tag='csw')

    def stage_addr(self, vdma, vtr0, vtr1, is_wo, base_s):
        I = self.I
        self.vfield(vdma, [(3, 3, 1024), (0, 3, 16)])
        self.vfield(14, [(4, 1, 64)])
        I('v_xor_b32', V(vdma), V(vdma), V(14))
        I('v_bfe_u32', V(14), V(0), 4, 1)
        I('v_add_u32', V(14), S(sW), V(14))
        I('v_and_b32', V(14), 3, V(14))
        I('v_lshlrev_b32', V(14), 5, V(14))
        self.vfield(13, [(3, 1, 64)])
        I('v_xor_b32', V(14), V(14), V(13))
        self.vfield(vtr0, [(5, 1, 512 if is_wo else 1024), (2, 2, 128), (0, 1, 16), (1, 1, 8)])
        I('v_add_u32', V(vtr0), V(vtr0), V(14))
        I('v_xor_b32', V(vtr1), 64, V(vtr0))
        I('v_add_u32', V(vtr0), S(base_s), V(vtr0))
        I('v_add_u32', V(vtr1), S(base_s), V(vtr1))

    def wo_issue(self, rnd):
        I = self.I
        self.smul_add(sT + 4, [(sW, 10240)], XB)
        self.stage_addr(212, 213, 214, True, sT + 4)
        self.smul_add(sT + 5, [(sW, 128 * 1024), (sCT, 128)], rnd * 64 * 1024)
        for i in range(8):
            self.P.run(self.dma(212, SWO, sT + 5, sT + 4, i * 1024, 'wo'))
            if i < 7:
                I('s_add_u32', S(sT + 5), S(sT + 5), 8192)

    def wo_read(self, rnd):
        P, I = self.P, self.I
        P.wait(vmtag='wo')
        for mm in range(2):
            for gh in range(2):
                ksl = rnd * 4 + mm * 2 + gh
                for ct in range(2):
                    for e in range(2):
                        I('ds_read_b64_tr_b16', wo_half(ksl, ct, e), V(213 + ct),
                          mods=f'offset:{mm * 4096 + gh * 1024 + e * 2048}', tag='wor')
        P.wait(dstag='wor')

    def stats_final(self, s, ss, nmu, rstd, sig=None, tmp=14):
        I = self.I
        ops = [('v_mul_f32', V(nmu), f2h(-1.0 / 512), V(s)),
               ('v_mul_f32', V(tmp), V(nmu), V(nmu)),
               ('v_mul_f32', V(ss), f2h(1.0 / 512), V(ss)),
               ('v_sub_f32', V(tmp), V(ss), V(tmp)),
               ('v_max_f32', V(tmp), 0, V(tmp)),
               ('v_add_f32', V(tmp), f2h(1e-5), V(tmp)),
               ('v_rsq_f32', V(rstd), V(tmp))]
        if sig is not None:
            ops.append(('v_mul_f32', V(sig), V(tmp), V(rstd)))
        return ops

    def reduce_ops(self, regs, tmp, steps):
        ops = []
        for op in steps:
            for i, r in enumerate(regs):
                ops.append(('v_mov_b32', V(tmp + i), V(r)))
            for i, r in enumerate(regs):
                ops.append((op, V(r), V(tmp + i)))
            for i, r in enumerate(regs):
                ops.append(('v_add_f32', V(r), V(r), V(tmp + i)))
        return ops

    def p1(self, ps):
        P, I = self.P, self.I
        vA, vWd, vTr, vTrQ, vTrH, vTrHq, vH, vL16 = 1, 2, 3, 4, 5, 6, 7, 8
        ACC = [16, 32, 48]
        HACC, CSK, CSQ, ONES = 64, 68, 72, 76
        S0, S1, HS0, HS1 = 80, 81, 82, 83
        WR, HW, AR, HR = 84, 108, 116, 180
        sA, sWb, sLw, sH = sT, sT + 1, sT + 2, sT + 3
        I('v_lshlrev_b32', V(vL16), 4, V(0))
        self.vfield(vTr, [(5, 1, 512), (2, 2, 64), (4, 1, 32), (0, 1, 16), (1, 1, 8)])
        I('v_add_u32', V(vTrQ), WQ, V(vTr))
        I('s_and_b32', S(sT + 6), S(sW), 1)
        I('s_lshr_b32', S(sT + 7), S(sW), 1)
        self.smul_add(sT + 8, [(sT + 6, 32), (sT + 7, 32768)])
        self.vfield(vTrH, [(4, 2, 512), (2, 2, 64), (0, 2, 8)])
        self.smul_add(sT + 9, [(sT + 6, 32)], WQ)
        I('v_add_u32', V(vTrHq), S(sT + 9), V(vTrH))
        I('v_add_u32', V(vTrH), S(sT + 8), V(vTrH))
        mat_lds = [(vTr, 0), (vTr, WV), (vTrQ, 0)]

        def wread(ks, mat, slot):
            a, base = mat_lds[mat]
            return [('ds_read_b64_tr_b16', V(WR + 4 * slot + 2 * e, 2), V(a), dict(mods=f'offset:{base + ks * 1024 + e * 256}'))
                    for e in range(2)]

        def hread(k16, addr, slot):
            return [('ds_read_b64_tr_b16', V(HW + 4 * slot + 2 * e, 2), V(addr), dict(mods=f'offset:{k16 * 2048 + e * 256}'))
                    for e in range(2)]

        def halo_valid(vreg):
            I('v_and_b32', V(14), 15, V(0))
            I('v_cmp_gt_u32', 'vcc', 8, V(14))
            I('s_cmp_eq_u32', S(sBJ), 0)
            I('s_cselect_b64', S(sT + 10, 2), -1, 0)
            I('s_or_b64', 'vcc', 'vcc', S(sT + 10, 2))
            I('v_mov_b32', V(14), OOB)
            I('v_cndmask_b32', V(vreg), V(vreg), V(14), 'vcc')

        if ps == 0:
            self.prepass_issue()
            self.vfield(vA, [(0, 5, 2048), (5, 1, 16)])
            self.smul_add(sA, [(sBJ, 256 * 1024), (sPAR, 1024), (sW, 65536)])
            self.vfield(vWd, [(2, 4, 3072), (0, 2, 16)])
            self.smul_add(sWb, [(sM, 64), (sW, 16 * 3072)])
            self.smul_add(sLw, [(sW, 1024)])
            self.smul_add(sH, [(sBJ, 256 * 1024), (sPAR, 1024)], -32768)
            self.vfield(vH, [(0, 4, 2048), (4, 2, 16)], sadd=sH)
            halo_valid(vH)

            def loads(i):
                ops = []
                for mat, col in ((0, 1024), (1, 2048), (2, 0)):
                    ops.append(('s_add_u32', S(sT + 9), S(sWb), i * 64 * 3072 + col))
                    ops += self.dma(vWd, SWQ, sT + 9, sLw, [WK, WV, WQ][mat] + i * 4096, f'w{i}')
                for kk in range(4):
                    ks = 4 * i + kk
                    ops.append(('buffer_load_dwordx4', V(AR + 4 * (ks % 16), 4), V(vA), srd(SX), S(sA),
                                dict(mods=f'offen offset:{32 * ks}')))
                for kk in range(2):
                    k16 = 2 * i + kk
                    ops.append(('buffer_load_dwordx4', V(HR + 4 * (k16 % 8), 4), V(vH), srd(SX), 0,
                                dict(mods=f'offen offset:{64 * k16}')))
                return ops
            P.run(loads(0))
            P.run(loads(1))
            for k in range(4):
                I('s_mov_b32', S(STAMP0 + 28 + k), S(sT + k))
            self.finish_tag_and_hello()
            self.prepass_finish()
            for k in range(4):
                I('s_mov_b32', S(sT + k), S(STAMP0 + 28 + k))
            P.run(loads(2))
            P.run(loads(3))
            for r in (S0, S1, HS0, HS1):
                I('v_mov_b32', V(r), 0)
            for i in range(4):
                I('v_mov_b32', V(ONES + i), 0x3f803f80)
            for i in range(8):
                for kk in range(4):
                    r = AR + 4 * ((4 * i + kk) % 16)
                    for c in range(4):
                        I('v_dot2c_f32_bf16', V(S0), V(r + c), V(ONES))
                        I('v_dot2c_f32_bf16', V(S1), V(r + c), V(r + c))
                for kk in range(2):
                    r = HR + 4 * ((2 * i + kk) % 8)
                    for c in range(4):
                        I('v_dot2c_f32_bf16', V(HS0), V(r + c), V(ONES))
                        I('v_dot2c_f32_bf16', V(HS1), V(r + c), V(r + c))
                P.wait(vmtag=f'w{i}')
                self.barrier()
                seq = [(4 * i + kk, mat) for kk in range(4) for mat in range(3)]
                for n in range(3):
                    P.run(wread(seq[n][0], seq[n][1], n % 6))
                for n, (ks, mat) in enumerate(seq):
                    I('v_mfma_f32_32x32x16_bf16', V(ACC[mat], 16), V(WR + 4 * (n % 6), 4), V(AR + 4 * (ks % 16), 4),
                      0 if ks == 0 else V(ACC[mat], 16))
                    if n + 3 < 12:
                        P.run(wread(seq[n + 3][0], seq[n + 3][1], (n + 3) % 6))
                    if n in (2, 8):
                        k16 = 2 * i + (n // 6)
                        P.run(hread(k16, vTrH, 0))
                        P.run(hread(k16, vTrHq, 1))
                    if n in (5, 11):
                        k16 = 2 * i + (n // 6)
                        c0 = lambda r: 0 if k16 == 0 else V(r, 4)
                        I('v_mfma_f32_16x16x32_bf16', V(HACC, 4), V(HW, 4), V(HR + 4 * (k16 % 8), 4), c0(HACC))
                        I('v_mfma_f32_16x16x32_bf16', V(CSK, 4), V(HW, 4), V(ONES, 4), c0(CSK))
                        I('v_mfma_f32_16x16x32_bf16', V(CSQ, 4), V(HW + 4, 4), V(ONES, 4), c0(CSQ))
                if i + 4 < 8:
                    P.run(loads(i + 4))
                if i == 1:
                    self.col_signal()
                if i == 4:
                    self.wo_issue(0)
            self.stamp('p1main')
            self.smul_add(sT + 8, [(sW, 64)], PS_CS)
            self.vfield(9, [(4, 2, 16)], sadd=sT + 8)
            I('s_and_b32', S(sT + 6), S(sW), 1)
            self.smul_add(sT + 8, [(sT + 6, 64)], PS_CS + 256)
            self.vfield(10, [(4, 2, 16)], sadd=sT + 8)
            I('ds_write_b128', V(9), V(CSK, 4), tag='csw')
            I('ds_write_b128', V(10), V(CSQ, 4), tag='csw')
            self.wo_read(0)
            self.wo_issue(1)
            P.run(self.reduce_ops([S0, S1], 12, ['v_permlane32_swap_b32']))
            P.run(self.reduce_ops([HS0, HS1], 12, ['v_permlane32_swap_b32', 'v_permlane16_swap_b32']))
            P.wait(dstag='csw')
            self.barrier()
        else:
            self.vfield(vA, [(4, 1, 16384), (5, 1, 256), (0, 4, 16)])
            self.smul_add(sA, [(sG, 131072), (sW, 32768)], XF[1])
            self.vfield(vWd, [(5, 1, 16384), (0, 5, 16)])
            self.smul_add(sWb, [(sG, 32768), (sW, 512)], ST[1])
            self.vfield(vH, [(4, 2, 128), (0, 4, 16)], const=-128)
            halo_valid(vH)
            self.smul_add(sH, [(sG, 16384)], HALO)
            self.smul_add(sT + 8, [(sW, 64)], PS_CS)
            self.vfield(9, [(4, 2, 16)], sadd=sT + 8)
            I('ds_read_b128', V(CSK, 4), V(9))
            self.poll(sFB, 3 * 512, S(MASK13, 2))
            self.stamp('p1wait')
            D = 8

            def aload(ks):
                ops = []
                if ks and ks % 8 == 0:
                    ops.append(('s_add_u32', S(sA), S(sA), 4096))
                ops.append(('buffer_load_dwordx4', V(AR + 4 * (ks % 16), 4), V(vA), srd(SWS), S(sA),
                            dict(mods=f'offen offset:{512 * (ks % 8)} sc1')))
                return ops

            def sload(i):
                ops = []
                if i and i % 2 == 0:
                    ops.append(('s_add_u32', S(sWb), S(sWb), 4096))
                ops.append(('buffer_load_dwordx4', V(HR + 4 * i, 4), V(vWd), srd(SWS), S(sWb),
                            dict(mods=f'offen offset:{2048 * (i % 2)} sc1')))
                return ops
            for ks in range(D):
                P.run(aload(ks))
            seq = [(ks, mat) for ks in range(32) for mat in range(3)]
            for n in range(4):
                P.run(wread(seq[n][0], seq[n][1], n % 6))
            head = self.p3_head_ops(1)
            for n, (ks, mat) in enumerate(seq):
                I('v_mfma_f32_32x32x16_bf16', V(ACC[mat], 16), V(WR + 4 * (n % 6), 4), V(AR + 4 * (ks % 16), 4),
                  0 if ks == 0 else V(ACC[mat], 16))
                if n + 4 < len(seq):
                    P.run(wread(seq[n + 4][0], seq[n + 4][1], (n + 4) % 6))
                if mat == 0:
                    if ks + D < 32:
                        P.run(aload(ks + D))
                    else:
                        P.run(sload(ks + D - 32))
            self.stamp('p1main')
            for i in range(1, 8):
                I('v_pk_add_f32', V(HR, 2), V(HR, 2), V(HR + 4 * i, 2))
                I('v_pk_add_f32', V(HR + 2, 2), V(HR + 2, 2), V(HR + 4 * i + 2, 2))
            I('v_add_f32', V(S0), V(HR), V(HR + 2))
            I('v_add_f32', V(S1), V(HR + 1), V(HR + 3))
            P.run(self.reduce_ops([S0, S1], 12, ['v_permlane32_swap_b32']))
            nohalo = P.newlabel('nohalo')
            I('s_cmp_eq_u32', S(sBJ), 0)
            I('s_cbranch_scc1', nohalo)
            I('s_mov_b32', S(sT + 8), -1)
            I('s_mov_b32', S(sT + 9), 0)
            self.poll(sFB, F_HALO, S(sT + 8, 2), inv=False)
            P.label(nohalo)
            P.force_wait(vm=0)
            for k16 in range(16):
                if k16 == 8:
                    I('s_add_u32', S(sH), S(sH), 4096)
                I('buffer_load_dwordx4', V(AR + 4 * k16, 4), V(vH), srd(SWS), S(sH), mods=f'offen offset:{512 * (k16 % 8)} sc1')
            self.vfield(9, [(4, 2, 384)])
            I('v_add_u32', V(9), V(9), V(vH))
            I('s_add_u32', S(sH), S(sH), 4096)
            for i in range(4):
                I('buffer_load_dwordx4', V(HR + 4 * i, 4), V(9), srd(SWS), S(sH), mods=f'offen offset:{128 * i} sc1')
            P.run(head)
            P.run(hread(0, vTrH, 0))
            for k16 in range(16):
                if k16 + 1 < 16:
                    P.run(hread(k16 + 1, vTrH, (k16 + 1) % 2))
                I('v_mfma_f32_16x16x32_bf16', V(HACC, 4), V(HW + 4 * (k16 % 2), 4), V(AR + 4 * k16, 4),
                  0 if k16 == 0 else V(HACC, 4))
            for i in range(1, 4):
                I('v_pk_add_f32', V(HR, 2), V(HR, 2), V(HR + 4 * i, 2))
                I('v_pk_add_f32', V(HR + 2, 2), V(HR + 2, 2), V(HR + 4 * i + 2, 2))
            I('v_add_f32', V(HS0), V(HR), V(HR + 2))
            I('v_add_f32', V(HS1), V(HR + 1), V(HR + 3))
            P.run(self.reduce_ops([HS0, HS1], 12, ['v_permlane32_swap_b32', 'v_permlane16_swap_b32']))

        NMU, RSTD, HNMU, HRSTD = 84, 85, 86, 87
        AUG, BM = 88, 92
        self.vfield(9, [(4, 1, 64), (0, 2, 4), (2, 1, 32), (3, 1, 16)], const=PS_CS)
        for mat in range(3):
            I('ds_read_b32', V(96 + mat), V(9), mods=f'offset:{mat * 128}')
        P.run(self.stats_final(S0, S1, NMU, RSTD))
        P.run(self.stats_final(HS0, HS1, HNMU, HRSTD))
        for mat in range(3):
            I('v_cvt_pk_bf16_f32', V(100), V(96 + mat), V(96 + mat))
            I('v_lshlrev_b32', V(100), 16, V(100))
            I('v_sub_f32', V(100), V(96 + mat), V(100))
            I('v_cvt_pk_bf16_f32', V(AUG + mat), V(96 + mat), V(100))
        I('v_mov_b32', V(AUG + 3), 0)
        I('v_cvt_pk_bf16_f32', V(BM), V(NMU), V(NMU))
        I('v_lshlrev_b32', V(100), 16, V(BM))
        I('v_sub_f32', V(100), V(NMU), V(100))
        I('v_cvt_pk_bf16_f32', V(100), V(100), V(100))
        I('v_cndmask_b32', V(BM), V(BM), V(100), S(HIM, 2))
        I('v_mov_b32', V(BM + 1), 0)
        I('v_mov_b32', V(BM + 2), 0)
        I('v_mov_b32', V(BM + 3), V(BM))
        I('v_mfma_f32_32x32x8_bf16', V(ACC[0], 16), V(AUG, 2), V(BM, 2), V(ACC[0], 16))
        I('v_mfma_f32_32x32x8_bf16', V(ACC[1], 16), V(AUG, 2), V(BM + 2, 2), V(ACC[1], 16))
        I('v_mfma_f32_32x32x8_bf16', V(ACC[2], 16), V(AUG + 2, 2), V(BM, 2), V(ACC[2], 16))
        vKVw, vKVh, vKr, vVr = 104, 105, 106, 107
        self.smul_add(sT + 8, [(sW, 1024)], KVB)
        self.vfield(vKVw, [(0, 5, 32), (5, 1, 16)], sadd=sT + 8, const=512)
        self.vfield(vKr, [(0, 4, 32), (4, 2, 8)])
        self.smul_add(sT + 9, [(sW, 4608)], KVB)
        I('v_add_u32', V(vKVh), S(sT + 9), V(vKr))
        I('v_add_u32', V(vKr), S(sT + 8), V(vKr))
        self.vfield(vVr, [(0, 6, 8)], sadd=sT + 8, const=9216)
        for b in range(4):
            I('v_fma_f32', V(HACC + b), V(HNMU), V(CSK + b), V(HACC + b))
        for b in range(4):
            I('v_mul_f32', V(HACC + b), V(HRSTD), V(HACC + b))
        I('v_cvt_pk_bf16_f32', V(HACC), V(HACC), V(HACC + 1))
        I('v_cvt_pk_bf16_f32', V(HACC + 1), V(HACC + 2), V(HACC + 3))
        I('ds_write_b64', V(vKVh), V(HACC, 2), tag='kvw')
        for mat in range(2):
            a = ACC[mat]
            for i in range(16):
                I('v_mul_f32', V(a + i), V(RSTD), V(a + i))
            for i in range(8):
                I('v_cvt_pk_bf16_f32', V(a + i), V(a + 2 * i), V(a + 2 * i + 1))
            for h in range(2):
                I('ds_write_b128', V(vKVw), V(a + 4 * h, 4), mods=f'offset:{mat * 9216 + h * 4608}', tag='kvw')
        q = ACC[2]
        for i in range(8):
            I('v_cvt_pk_bf16_f32', V(q + i), V(q + 2 * i), V(q + 2 * i + 1))
        MC, MP, MP0, AC_, AP_, CQ0, CQ1, CN = 116, 120, 124, 128, 130, 132, 133, 134
        I('v_and_b32', V(9), 15, V(0))
        self.vfield(10, [(4, 2, 4)])
        I('v_sub_u32', V(9), V(9), V(10))
        I('v_mov_b32', V(11), 0xff800000)
        I('v_mov_b32', V(12), 0)
        I('s_add_u32', S(sT + 8), S(sBJ), S(sW))
        I('s_cmp_eq_u32', S(sT + 8), 0)
        I('s_cselect_b64', S(sT + 10, 2), -1, 0)
        for b in range(4):
            I('v_subrev_u32', V(10), b, V(9))
            I('v_cmp_gt_u32', 'vcc', 8, V(10))
            I('v_cndmask_b32', V(MC + b), V(11), V(12), 'vcc')
            I('v_cmp_gt_i32', 'vcc', -8, V(10))
            I('v_cndmask_b32', V(MP + b), V(11), V(12), 'vcc')
            I('v_cndmask_b32', V(MP0 + b), V(MP + b), V(11), S(sT + 10, 2))
        I('v_mov_b32', V(13), 0xffff)
        for pr in range(2):
            I('v_cmp_le_i32', 'vcc', 2 * pr, V(9))
            I('v_cndmask_b32', V(AC_ + pr), V(12), V(13), 'vcc')
            I('v_cmp_le_i32', 'vcc', 2 * pr + 1, V(9))
            I('v_cndmask_b32', V(10), V(12), V(13), 'vcc')
            I('v_lshl_or_b32', V(AC_ + pr), V(10), 16, V(AC_ + pr))
            I('v_not_b32', V(AP_ + pr), V(AC_ + pr))
        for h in range(2):
            I('v_permlane16_swap_b32', V(q + 4 * h), V(q + 4 * h + 2))
            I('v_permlane16_swap_b32', V(q + 4 * h + 1), V(q + 4 * h + 3))
        I('v_mul_f32', V(CQ0), f2h(0.25 * LOG2E), V(RSTD))
        I('v_sub_f32', V(CN), 0, V(CQ0))
        I('v_mov_b32', V(CQ1), V(CQ0))
        I('v_mov_b32', V(ONES), 0x3f803f80)
        I('v_mov_b32', V(ONES + 1), 0x3f803f80)
        I('v_permlane16_swap_b32', V(CQ0), V(CQ1))
        P.wait(dstag='kvw')
        self.barrier()
        KO, VO = 136, 148
        for h in range(2):
            for t in range(3):
                I('ds_read_b64', V(KO + 6 * h + 2 * t, 2), V(vKr), mods=f'offset:{h * 4608 + t * 512}')
        for h in range(2):
            for t in range(3):
                I('ds_read_b64_tr_b16', V(VO + 6 * h + 2 * t, 2), V(vVr), mods=f'offset:{h * 4608 + t * 512}')
        SC, SP, MX, OA, SM = 160, 176, 192, 16, 32
        units = [(t, h) for t in range(2) for h in range(2)]
        for u, (t, h) in enumerate(units):
            qop = V(q + 4 * h + 2 * t, 2)
            I('v_mfma_f32_16x16x16_bf16', V(SC + 4 * u, 4), V(KO + 6 * h + 2 * (t + 1), 2), qop, V(MC, 4))
            I('v_mfma_f32_16x16x16_bf16', V(SP + 4 * u, 4), V(KO + 6 * h + 2 * t, 2), qop, V(MP0 if t == 0 else MP, 4))
        for u in range(4):
            for b in range(4):
                I('v_max_f32', V(SC + 4 * u + b), V(SC + 4 * u + b), V(SP + 4 * u + b))
            I('v_max3_f32', V(MX + u), V(SC + 4 * u), V(SC + 4 * u + 1), V(SC + 4 * u + 2))
            I('v_max_f32', V(MX + u), V(MX + u), V(SC + 4 * u + 3))
        I('v_permlane32_swap_b32', V(MX), V(MX + 1))
        I('v_permlane32_swap_b32', V(MX + 2), V(MX + 3))
        I('v_max_f32', V(MX), V(MX), V(MX + 1))
        I('v_max_f32', V(MX + 2), V(MX + 2), V(MX + 3))
        I('v_permlane16_swap_b32', V(MX), V(MX + 2))
        I('v_max_f32', V(MX), V(MX), V(MX + 2))
        I('v_mul_f32', V(MX), V(MX), V(CN))
        I('v_mov_b32', V(MX + 2), V(MX))
        I('v_permlane16_swap_b32', V(MX), V(MX + 2))
        I('v_mov_b32', V(MX + 1), V(MX))
        I('v_mov_b32', V(MX + 3), V(MX + 2))
        I('v_permlane32_swap_b32', V(MX), V(MX + 1))
        I('v_permlane32_swap_b32', V(MX + 2), V(MX + 3))
        for u, (t, h) in enumerate(units):
            for b in range(4):
                I('v_fma_f32', V(SC + 4 * u + b), V(SC + 4 * u + b), V(CQ0 + t), V(MX + u))
            for b in range(4):
                I('v_exp_f32', V(SC + 4 * u + b), V(SC + 4 * u + b))
        for u, (t, h) in enumerate(units):
            I('v_cvt_pk_bf16_f32', V(SC + 4 * u), V(SC + 4 * u), V(SC + 4 * u + 1))
            I('v_cvt_pk_bf16_f32', V(SC + 4 * u + 1), V(SC + 4 * u + 2), V(SC + 4 * u + 3))
            for pr in range(2):
                I('v_and_b32', V(SP + 4 * u + pr), V(SC + 4 * u + pr), V(AC_ + pr))
                I('v_and_b32', V(SP + 4 * u + 2 + pr), V(SC + 4 * u + pr), V(AP_ + pr))
        for u, (t, h) in enumerate(units):
            I('v_mfma_f32_16x16x16_bf16', V(SM + 4 * u, 4), V(ONES, 2), V(SC + 4 * u, 2), 0)
            I('v_mfma_f32_16x16x16_bf16', V(OA + 4 * u, 4), V(VO + 6 * h + 2 * (t + 1), 2), V(SP + 4 * u, 2), 0)
        for u, (t, h) in enumerate(units):
            I('v_mfma_f32_16x16x16_bf16', V(OA + 4 * u, 4), V(VO + 6 * h + 2 * t, 2), V(SP + 4 * u + 2, 2), V(OA + 4 * u, 4))
        self.smul_add(sT + 8, [(sG, 131072), (sW, 32768), (sM, 1024)], OF[ps])
        I('s_add_u32', S(sT + 9), S(sT + 8), 16384)
        for u in range(4):
            I('v_rcp_f32', V(SM + 4 * u), V(SM + 4 * u))
        OP = 196
        for u, (t, h) in enumerate(units):
            for b in range(4):
                I('v_mul_f32', V(OA + 4 * u + b), V(OA + 4 * u + b), V(SM + 4 * u))
            I('v_cvt_pk_bf16_f32', V(OP + 2 * u), V(OA + 4 * u), V(OA + 4 * u + 1))
            I('v_cvt_pk_bf16_f32', V(OP + 2 * u + 1), V(OA + 4 * u + 2), V(OA + 4 * u + 3))
            if h == 1:
                I('buffer_store_dwordx4', V(OP + 4 * t, 4), V(vL16), srd(SWS), S(sT + 8 + t), mods='offen', tag='st')
        if ps == 0:
            I('s_mov_b32', S(sT + 8), 0xffff)
            I('s_mov_b32', S(sT + 9), 0)
            self.poll(sFB, F_HELLO, S(sT + 8, 2), hello=True)
        self.signal(sOWN, (4 * ps + 0) * 512)
        self.stamp('p1end')
        if ps == 0:
            self.wo_read(1)
        self.barrier()

    def p24(self, ph, ps):
        P, I = self.P, self.I
        is2 = ph == 2
        nks = 8 if is2 else 28
        wreg = wo_reg if is2 else wd_reg
        final = (not is2) and ps == 1
        xi = 2 * ps + (0 if is2 else 1)
        vA, vX, vN, vW1, vRd, vL16 = 1, 2, 3, 4, 7, 8
        ACC = [[16, 32], [48, 64]]
        EX, PK, AR = 80, 104, 128
        NR = 16
        sA, sXs, sN = sT, sT + 2, sT + 4
        I('v_lshlrev_b32', V(vL16), 4, V(0))
        self.vfield(vX, [(4, 1, 16384), (5, 1, 256), (0, 4, 16)])
        self.vfield(vN, [(0, 5, 2048), (5, 1, 16)])
        if is2:
            I('v_mov_b32', V(vA), V(vX))
            self.smul_add(sA, [(sG, 131072), (sTH, 65536), (sW, 4096)], OF[ps])
            thstride = 32768
        else:
            self.vfield(vA, [(4, 1, 57344), (5, 1, 256), (0, 4, 16)])
            self.smul_add(sA, [(sG, 458752), (sTH, 4 * 57344), (sW, 28 * 512)], HF[ps])
            thstride = 2 * 57344
        I('s_add_u32', S(sA + 1), S(sA), thstride)
        self.smul_add(sN, [(sBJ, 256 * 1024), (sTH, 128 * 1024), (sPAR, 1024), (sCT, 128), (sW, 32)])
        I('s_add_u32', S(sN + 1), S(sN), 65536)
        self.smul_add(sXs, [(sG, 131072), (sTH, 65536), (sCT, 2048), (sW, 512)])
        for th in range(2):
            if xi == 0:
                I('buffer_load_dwordx4', V(PK + 4 * th, 4), V(vN), srd(SX), S(sN + th), mods='offen')
            else:
                I('s_add_u32', S(sT + 8), S(sXs), XF[xi - 1] + th * 32768)
                I('buffer_load_dwordx4', V(PK + 4 * th, 4), V(vX), srd(SWS), S(sT + 8), mods='offen sc1')
        for qq in range(1, 4):
            I('s_add_u32', S(sT + 8), S(sW), qq)
            I('s_and_b32', S(sT + 8), S(sT + 8), 3)
            self.smul_add(sT + 9, [(sT + 8, 6144)], RB + (qq - 1) * 2048)
            I('v_add_u32', V(vW1 + qq - 1), S(sT + 9), V(vL16))
        self.smul_add(sT + 9, [(sW, 6144)], RB)
        I('v_add_u32', V(vRd), S(sT + 9), V(vL16))
        for th in range(2):
            a = ACC[th][0]
            for i in range(4):
                I('v_lshlrev_b32', V(a + 2 * i), 16, V(PK + 4 * th + i))
                I('v_and_b32', V(a + 2 * i + 1), 0xffff0000, V(PK + 4 * th + i))
            for i in range(8, 16):
                I('v_mov_b32', V(a + i), 0)
        self.poll(sFB, (4 * ps + (0 if is2 else 2)) * 512, S(MASK24, 2))
        self.stamp(f'p{ph}wait')
        if ph == 4 and ps == 0:
            skip = P.newlabel('noepoch')
            I('s_add_u32', S(sT + 8), S(2), S(sW))
            I('s_cmp_lg_u32', S(sT + 8), 0)
            I('s_cbranch_scc1', skip)
            P.raw(f'  v_mov_b32 v220, {S(TAG)}')
            P.raw(f'  v_mov_b32 v221, {S(TAG + 1)}')
            P.raw(f'  s_mov_b32 {S(sT + 8)}, {EPOCH}')
            P.raw('  s_mov_b64 exec, 1')
            P.raw(f'  buffer_store_dwordx2 v[220:221], off, {srd(SWS)}, {S(sT + 8)} sc1')
            P.raw('  s_mov_b64 exec, -1')
            P.raw('  s_waitcnt vmcnt(0)')
            P.label(skip)
        seq = [(th, k) for th in range(2) for k in range(nks)]
        D = 8

        def aload(n):
            th, k = seq[n]
            ops = []
            if k and k % 8 == 0:
                ops.append(('s_add_u32', S(sA + th), S(sA + th), 4096))
            ops.append(('buffer_load_dwordx4', V(AR + 4 * (n % NR), 4), V(vA), srd(SWS), S(sA + th),
                        dict(mods=f'offen offset:{512 * (k % 8)} sc1')))
            return ops

        def quarter(th, qq):
            return ACC[th][qq >> 1] + 8 * (qq & 1)

        def xwrites(th):
            return [('ds_write_b128', V(vW1 + qq - 1), V(quarter(th, qq) + 4 * hf, 4), dict(mods=f'offset:{hf * 1024}', tag='xw'))
                    for qq in range(1, 4) for hf in range(2)]

        def xreads():
            return [('ds_read_b128', V(EX + 8 * s + 4 * hf, 4), V(vRd), dict(mods=f'offset:{s * 2048 + hf * 1024}', tag='xr'))
                    for s in range(3) for hf in range(2)]

        def xadds(th, packed):
            a = ACC[th][0]
            ops = []
            if packed:
                for i in range(0, 8, 2):
                    ops.append(('v_pk_add_f32', V(a + i, 2), V(a + i, 2), V(EX + i, 2)))
                for i in range(0, 8, 2):
                    ops.append(('v_pk_add_f32', V(EX + 8 + i, 2), V(EX + 8 + i, 2), V(EX + 16 + i, 2)))
                for i in range(0, 8, 2):
                    ops.append(('v_pk_add_f32', V(a + i, 2), V(a + i, 2), V(EX + 8 + i, 2)))
            else:
                for s in range(3):
                    for i in range(8):
                        ops.append(('v_add_f32', V(a + i), V(a + i), V(EX + 8 * s + i)))
            for i in range(4):
                ops.append(('v_cvt_pk_bf16_f32', V(PK + 4 * th + i), V(a + 2 * i), V(a + 2 * i + 1)))
            if final:
                ops.append(('buffer_store_dwordx4', V(PK + 4 * th, 4), V(vN), srd(SOUT), S(sN + th), dict(mods='offen', tag='st')))
            else:
                ops.append(('s_add_u32', S(sT + 8), S(sXs), XF[xi] + th * 32768))
                ops.append(('buffer_store_dwordx4', V(PK + 4 * th, 4), V(vX), srd(SWS), S(sT + 8), dict(mods='offen', tag='st')))
            return ops

        for n in range(D):
            P.run(aload(n))
        fill = []
        for n, (th, k) in enumerate(seq):
            if th == 1 and k == 2:
                fill = (xwrites(0) + [lambda: P.wait(dstag='xw'), self.barrier] + xreads() + xadds(0, False)
                        + [self.barrier])
            for ct in range(2):
                c = V(ACC[th][ct], 16) if (ct == 0 or k > 0) else 0
                I('v_mfma_f32_32x32x16_bf16', V(ACC[th][ct], 16), wreg(k, ct), V(AR + 4 * (n % NR), 4), c)
                if ct == 0 and n + D < len(seq):
                    P.run(aload(n + D))
                else:
                    take = 4 if is2 else 2
                    if fill and isinstance(fill[0], tuple) and fill[0][0].startswith('ds_'):
                        take = 2 if is2 else 1
                    P.run(fill[:take])
                    fill = fill[take:]
        P.run(fill)
        self.stamp(f'p{ph}main')
        P.run(xwrites(1))
        P.wait(dstag='xw')
        self.barrier()
        P.run(xreads())
        P.run(xadds(1, True))
        if not final:
            SS = 112
            I('v_mov_b32', V(10), 0x3f803f80)
            for r in range(4):
                I('v_mov_b32', V(SS + r), 0)
            for i in range(4):
                for th in range(2):
                    I('v_dot2c_f32_bf16', V(SS + 2 * th), V(PK + 4 * th + i), V(10))
                    I('v_dot2c_f32_bf16', V(SS + 2 * th + 1), V(PK + 4 * th + i), V(PK + 4 * th + i))
            I('s_lshr_b32', S(sT + 8), S(sW), 1)
            I('s_and_b32', S(sT + 9), S(sW), 1)
            self.smul_add(sT + 10, [(sG, 32768), (sCT, 4096), (sT + 8, 2048), (sTH, 1024), (sT + 9, 8)], ST[xi])
            I('v_permlane32_swap_b32', V(SS), V(SS + 2))
            I('v_permlane32_swap_b32', V(SS + 1), V(SS + 3))
            I('v_add_f32', V(SS), V(SS), V(SS + 2))
            I('v_add_f32', V(SS + 1), V(SS + 1), V(SS + 3))
            I('buffer_store_dwordx2', V(SS, 2), V(vL16), srd(SWS), S(sT + 10), mods='offen', tag='st')
            self.signal(sOWN, (4 * ps + (1 if is2 else 3)) * 512)
            if ph == 4:
                skip = P.newlabel('nohalow')
                I('s_cmp_eq_u32', S(sTH), 0)
                I('s_cbranch_scc1', skip)
                I('s_cmp_eq_u32', S(sBJ), 7)
                I('s_cbranch_scc1', skip)
                self.vfield(9, [(5, 1, 128), (0, 5, 16)], const=-24 * 16)
                I('v_and_b32', V(11), 31, V(0))
                I('v_mov_b32', V(12), OOB)
                I('v_cmp_gt_u32', 'vcc', 24, V(11))
                I('v_cndmask_b32', V(9), V(9), V(12), 'vcc')
                I('v_add_u32', V(11), -56 * 16, V(vL16))
                I('v_cmp_gt_u32', 'vcc', 56, V(0))
                I('v_cndmask_b32', V(11), V(11), V(12), 'vcc')
                self.smul_add(sT + 10, [(sG, 16384), (sCT, 1024), (sW, 256)], HALO + 16384)
                I('buffer_store_dwordx4', V(PK + 4, 4), V(9), srd(SWS), S(sT + 10), mods='offen sc1', tag='st')
                self.smul_add(sT + 10, [(sG, 16384), (sCT, 256), (sT + 8, 128), (sT + 9, 8)], HALO + 16384 + 8192)
                I('buffer_store_dwordx2', V(SS, 2), V(11), srd(SWS), S(sT + 10), mods='offen sc1', tag='st')
                self.smul_add(sT + 10, [(sG, 8192), (sCT, 32), (sW, 8)], FLAGS + 8192 + F_HALO)
                self.signal(sT + 10, 0, force_slow=True)
                P.force_wait(vm=0)
                P.label(skip)
                P.force_wait(vm=0)
            self.barrier()
        self.stamp(f'p{ph}end')

    def p3_plan(self, ps):
        c = self.o.get('c3', 3)
        order = list(range(7)) if ps == 0 else list(range(6, -1, -1))
        units = []
        seq = []
        for i in range(8):
            u0 = len(units)
            for n in range(c):
                units.append((order[n], 4 * i))
            for kk in range(4):
                for n in range(c):
                    seq.append((n, 4 * i + kk, u0 + n, kk))
        for n in range(c, 7):
            for i in range(8):
                units.append((order[n], 4 * i))
                for kk in range(4):
                    seq.append((n, 4 * i + kk, len(units) - 1, kk))
        return c, order, units, seq

    def p3_dma(self, ps, u, R, units, vL, sBase, sLds):
        tile, kb = units[u]
        return [('s_add_u32', S(sT + 7), S(sBase), tile * 32768 + kb * 1024)] + \
            self.dma(vL, SWS, sT + 7, sLds, XB + (u % R) * 4096, f'u{u}', mods='sc1' if ps == 0 else '')

    def p3_head_ops(self, ps):
        c, order, units, seq = self.p3_plan(ps)
        R = 9 if ps == 0 else 15
        ops = [lambda: self.smul_add(sT + 5, [(sM, 8 * 32768), (sW, 1024)], WGU),
               lambda: self.smul_add(sT + 6, [(sW, 1024)])]
        for u in range(9):
            ops += self.p3_dma(ps, u, R, units, 8, sT + 5, sT + 6)
        return ops

    def p3(self, ps):
        P, I = self.P, self.I
        c, order, units, seq = self.p3_plan(ps)
        R = 9 if ps == 0 else 15
        vA, vL, vCs, NMU, AA, SIG, vR = 1, 8, 2, 3, 4, 5, 6
        CS = 10
        WR, ACC0, AR = 16, 32, 96
        nacc = c + 1
        assert ACC0 + 16 * nacc <= AR
        acc = lambda n: ACC0 + 16 * (n % nacc)
        sA, sSt, sH, sB, sLds = sT, sT + 1, sT + 2, sT + 5, sT + 6
        if ps == 0:
            self.col_wait_and_cs()
            I('v_lshlrev_b32', V(8), 4, V(0))
            P.run(self.p3_head_ops(0))
            self.cs_finish()
        self.vfield(vA, [(4, 1, 16384), (5, 1, 256), (0, 4, 16)])
        self.smul_add(sA, [(sG, 131072), (sW, 32768)], XF[2 * ps])
        self.vfield(vCs, [(5, 1, 16384), (0, 5, 16)])
        self.smul_add(sSt, [(sG, 32768), (sW, 512)], ST[2 * ps])
        self.smul_add(sH, [(sG, 458752), (sW, 2 * 57344), (sM, 7 * 512)], HF[ps])
        self.smul_add(sB, [(sM, 8 * 32768), (sW, 1024)], WGU)
        self.smul_add(sLds, [(sW, 1024)])
        I('v_lshlrev_b32', V(vL), 4, V(0))
        I('v_add_u32', V(vR), XB, V(vL))
        stage = ps == 0
        if stage:
            sSb, sSrc = sT + 3, sT + 4
            self.smul_add(sSb, [(sW, 6144)], RB)
            self.stage_addr(7, 9, 10, False, sSb)
            self.smul_add(sSrc, [(sW, 448 * 1024), (sCT, 128)])
        self.poll(sFB, (4 * ps + 1) * 512, S(MASK13, 2))
        self.stamp('p3wait')
        D = 8

        def aload(ks):
            ops = []
            if ks and ks % 8 == 0:
                ops.append(('s_add_u32', S(sA), S(sA), 4096))
            ops.append(('buffer_load_dwordx4', V(AR + 4 * ks, 4), V(vA), srd(SWS), S(sA),
                        dict(mods=f'offen offset:{512 * (ks % 8)} sc1')))
            return ops
        TB = acc(c)

        def sload(i):
            ops = []
            if i and i % 2 == 0:
                ops.append(('s_add_u32', S(sSt), S(sSt), 4096))
            ops.append(('buffer_load_dwordx4', V(TB + 4 * (i % 4), 4), V(vCs), srd(SWS), S(sSt),
                        dict(mods=f'offen offset:{2048 * (i % 2)} sc1')))
            return ops

        def sadd(first):
            ops = []
            for i in range(4):
                for hf in range(2):
                    for st in range(2):
                        src = V(TB + 4 * i + 2 * hf + st)
                        dst = V(NMU + st)
                        if first and i == 0 and hf == 0:
                            ops.append(('v_mov_b32', dst, src))
                        else:
                            ops.append(('v_add_f32', dst, dst, src))
            return ops

        def epilogue(n):
            a = acc(n)
            j = order[n]
            ops = []
            for half in range(2):
                ops.append(('ds_read_b128', V(12, 4), V(vCs), dict(mods=f'offset:{j * 128 + half * 32}')))
                for b in range(4):
                    ops.append(('v_fma_f32', V(a + 4 * half + b), V(NMU), V(12 + b), V(a + 4 * half + b)))
                ops.append(('ds_read_b128', V(12, 4), V(vCs), dict(mods=f'offset:{j * 128 + 64 + half * 32}')))
                for b in range(4):
                    ops.append(('v_mul_f32', V(a + 4 * half + b), V(AA), V(a + 4 * half + b)))
                for b in range(4):
                    ops.append(('v_exp_f32', V(a + 4 * half + b), V(a + 4 * half + b)))
                for b in range(4):
                    ops.append(('v_fma_f32', V(a + 8 + 4 * half + b), V(NMU), V(12 + b), V(a + 8 + 4 * half + b)))
                for b in range(4):
                    ops.append(('v_fma_f32', V(a + 4 * half + b), V(a + 4 * half + b), V(SIG), V(SIG)))
                for b in range(4):
                    ops.append(('v_rcp_f32', V(a + 4 * half + b), V(a + 4 * half + b)))
                for b in range(4):
                    ops.append(('v_mul_f32', V(a + 8 + 4 * half + b), V(a + 8 + 4 * half + b), V(a + 4 * half + b)))
            for i in range(4):
                ops.append(('v_cvt_pk_bf16_f32', V(a + i), V(a + 8 + 2 * i), V(a + 8 + 2 * i + 1)))
            ops.append(('buffer_store_dwordx4', V(a, 4), V(vA), srd(SWS), S(sH), dict(mods=f'offen offset:{j * 512}', tag='st')))
            return ops

        def cost(op):
            if callable(op):
                return 1
            return 2 if op[0] in TRANS else 1

        N = len(seq)
        last_of_unit = {}
        for i, (n, ks, u, sub) in enumerate(seq):
            last_of_unit[u] = i
        LA = 3
        step0 = 4 * c
        bars = list(range(0, 32 * c, step0)) + list(range(32 * c, N, 8 if ps == 0 else 16))
        bar_next = {b: (bars[k + 1] if k + 1 < len(bars) else N) for k, b in enumerate(bars)}
        next_dma = 9
        dmaq = []

        def do_barrier(j, cur):
            nonlocal next_dma
            need = max(seq[x][2] for x in range(j, bar_next[j]))
            while dmaq and dmaq[0][0] <= need:
                P.run(dmaq.pop(0)[1])
            assert need < next_dma, (need, next_dma, j)
            P.wait(vmtag=[f'u{x}' for x in range(need + 1)], dstag='csw')
            self.barrier()
            while next_dma < len(units):
                old = next_dma - R
                if old >= 0 and last_of_unit[old] >= cur:
                    break
                dmaq.append((next_dma, self.p3_dma(ps, next_dma, R, units, vL, sB, sLds)))
                next_dma += 1

        def wread(i):
            n, ks, u, sub = seq[i]
            return [('ds_read_b128', V(WR + 4 * (i % 4), 4), V(vR), dict(mods=f'offset:{(u % R) * 4096 + sub * 1024}'))]

        for ks in range(D):
            P.run(aload(ks))
        do_barrier(0, 0)
        for i in range(LA):
            P.run(wread(i))
        vmq = []
        for ks in range(D, 32):
            vmq.append(aload(ks))
        fill = []
        stq = []
        if stage:
            def st_dma(k):
                ops = []
                for hh in range(2):
                    ops += [('s_add_u32', S(sT + 8), S(sSrc), (16 * k + 8 * hh) * 1024)]
                    ops += self.dma(7, SWD, sT + 8, sSb, (k % 3) * 2048 + hh * 1024, f'd{k}')
                return ops

            def st_read(k):
                return [lambda: P.wait(vmtag=f'd{k}')] + \
                    [('ds_read_b64_tr_b16', wd_half(k, ct, e), V(9 + ct), dict(mods=f'offset:{(k % 3) * 2048 + e * 512}', tag=f'dr{k}'))
                     for ct in range(2) for e in range(2)]
        post_stats = False
        for i, (n, ks, u, sub) in enumerate(seq):
            if ks == 0 and n >= nacc:
                while fill and fill[0][0] <= n - nacc:
                    P.run([fill.pop(0)[1]])
            if ks == 0 and n == c:
                while fill and fill[0][0] < 0:
                    P.run([fill.pop(0)[1]])
            I('v_mfma_f32_32x32x16_bf16', V(acc(n), 16), V(WR + 4 * (i % 4), 4), V(AR + 4 * ks, 4),
              0 if ks == 0 else V(acc(n), 16))
            if i + LA in bar_next:
                do_barrier(i + LA, i + 1)
            if i + LA < N:
                P.run(wread(i + LA))
            budget = 4
            if n == 0 and vmq:
                P.run(vmq.pop(0))
                budget -= 2
                if not vmq and not post_stats:
                    post_stats = True
                    for q in range(4):
                        fill += [(-1, op) for op in sload(q)]
                    fill += [(-1, op) for op in sadd(True)]
                    for q in range(4, 8):
                        fill += [(-1, op) for op in sload(q)]
                    fill += [(-1, op) for op in sadd(False)]
                    fill += [(-1, op) for op in self.reduce_ops([NMU, NMU + 1], 12, ['v_permlane32_swap_b32'])]
                    fill += [(-1, op) for op in self.stats_final(NMU, NMU + 1, NMU, AA, SIG, tmp=12)]
                    fill += [(-1, ('v_mul_f32', V(AA), f2h(-LOG2E), V(AA)))]
                    fill += [(-1, lambda: self.vfield(vCs, [(5, 1, 16)], const=PS_CSGU)),
                             (-1, lambda: self.vfield(vA, [(4, 1, 57344), (5, 1, 256), (0, 4, 16)]))]
            elif dmaq and (i % 2 == 1):
                P.run(dmaq.pop(0)[1])
                budget -= 3
            if stage:
                q8, r8 = divmod(i, 8)
                if r8 == 2 and q8 >= 2:
                    P.run(st_read(q8 - 2))
                    budget = 0
                if r8 == 6:
                    if q8 == 0:
                        P.run(st_dma(0))
                    if q8 + 1 < 28:
                        if q8 >= 2:
                            P.wait(dstag=f'dr{q8 - 2}')
                        P.run(st_dma(q8 + 1))
                    budget = 0
            while fill and budget >= cost(fill[0][1]):
                o = fill.pop(0)[1]
                budget -= cost(o)
                P.run([o])
            if ks == 31:
                fill += [(n, op) for op in epilogue(n)]
        self.stamp('p3main')
        P.run([o for _, o in fill])
        self.signal(sOWN, (4 * ps + 2) * 512)
        if stage:
            P.run(st_read(26))
            P.run(st_read(27))
            P.wait(ds0=True)
        self.barrier()
        self.stamp('p3end')

    def dump_stamps(self):
        if not self.o.get('stamps'):
            return
        P, I = self.P, self.I
        self.smul_add(sT, [(2, 512), (sW, 128)], TDUMP)
        P.force_wait(vm=0, lgkm=0)
        for i in range(16):
            I('v_mov_b32', V(16 + i), S(STAMP0 + 2 * i) if i < self.nstamp else 0)
        I('v_mov_b32', V(32), S(MODE))
        I('v_mov_b32', V(33), S(sXCC))
        I('s_mov_b64', 'exec', 1)
        for i in range(4):
            I('buffer_store_dwordx4', V(16 + 4 * i, 4), 'off', srd(SWS), S(sT), mods=f'offset:{16 * i}')
        I('buffer_store_dwordx2', V(32, 2), 'off', srd(SWS), S(sT), mods='offset:64')

    def build(self):
        P = self.P
        self.prologue()
        stop = self.o.get('stop', 99)
        sel = self.o.get('stamp_pass', 0)
        st = self.o.get('stamps')
        n = 0
        for ps in range(2):
            self.o['stamps'] = st and (sel == ps)
            if ps == sel:
                self.stamp('start')
            for fn in (lambda: self.p1(ps), lambda: self.p24(2, ps), lambda: self.p3(ps), lambda: self.p24(4, ps)):
                n += 1
                if n <= stop:
                    fn()
        self.o['stamps'] = st
        self.stamp('end')
        self.dump_stamps()
        P.label('L_end')
        P.raw('  s_endpgm')
        hdr = open('interleave_layers__sliding_local_dilated__glu_gated_glu__prompt.s.ref').read().split('\n')
        head = [l for l in hdr if l.startswith(';') and '@launch' not in l]
        txt = '\n'.join(head) + '\n; @launch grid=(256,1,1) block=(256,1,1) lds=163840\n'
        txt += '.amdgcn_target "amdgcn-amd-amdhsa--gfx950"\n.text\n'
        txt += f'.globl {NAME}\n.p2align 8\n.type {NAME},@function\n{NAME}:\n'
        txt += P.text()
        txt += f'''.section .rodata,"a"
.p2align 6
.amdhsa_kernel {NAME}
  .amdhsa_next_free_vgpr 512
  .amdhsa_next_free_sgpr 102
  .amdhsa_accum_offset 256
  .amdhsa_group_segment_fixed_size 0
  .amdhsa_kernarg_size 80
  .amdhsa_user_sgpr_count 2
  .amdhsa_user_sgpr_kernarg_segment_ptr 1
  .amdhsa_system_sgpr_workgroup_id_x 1
  .amdhsa_float_denorm_mode_32 3
.end_amdhsa_kernel
'''
        return txt


def generate(**opt):
    g = Gen(dict(opt))
    t = g.build()
    return t, g


if __name__ == '__main__':
    out = sys.argv[1]
    opt = {}
    for a in sys.argv[2:]:
        k, v = a.split('=')
        opt[k] = int(v)
    t, g = generate(**opt)
    open(out, 'w').write(t)
    print('instructions', g.P.nins, 'waits', g.P.nwait, 'nops', g.P.nnop, 'stamps', g.stamp_names)
```
